```python
import torch

def _softmax(x, axis=-1):
    return torch.softmax(x, dim=axis)

def _gelu(x):
    return torch.nn.functional.gelu(x, approximate='tanh')

def _silu(x):
    return torch.nn.functional.silu(x)

def _sigmoid(x):
    return torch.sigmoid(x)

def _layernorm(x, axis=-1, eps=1e-05):
    m = x.mean(dim=axis, keepdim=True)
    v = x.var(dim=axis, keepdim=True, unbiased=False)
    return (x - m) / torch.sqrt(v + eps)

def _scatter_add(tgt, idx, src, axis=0):
    return tgt.clone().index_add_(axis, idx, src)

def _segment_sum(src, seg, n):
    out = torch.zeros((n,) + src.shape[1:], dtype=src.dtype)
    return out.index_add_(0, seg, src)

def _pad(x, pw):
    flat = tuple((v for pair in reversed(pw) for v in pair))
    return torch.nn.functional.pad(x, flat)
kernel_name = 'standalone__molecular_angular_painn__graph'

def setup_inputs():

    _w = lambda a: (lambda t: t.to(torch.bfloat16) if t.is_floating_point() else t)(torch.as_tensor(a))
    N, deg, D = (12500, 32, 128)
    n_rbf = max(4, 4)
    E = N * deg
    cutoff = 5.0
    freqs = (torch.arange(1, n_rbf + 1) * torch.pi / cutoff).to(float)
    return {'sv': _w((lambda *s: torch.randn(*s, dtype=torch.bfloat16) * 0.4)(N, 4, D) * 0.3), 'pos': _w((lambda *s: torch.randn(*s, dtype=torch.bfloat16) * 3.2)(N, 3) * 1.2), 'src': _w((lambda lo, hi, *s: torch.randint(lo, hi, s))(0, N, E).to(torch.int64)), 'dst': _w((lambda lo, hi, *s: torch.randint(lo, hi, s))(0, N, E).to(torch.int64)), 'freqs': _w(freqs), 'w_phi1': _w((lambda *s: torch.randn(*s, dtype=torch.bfloat16) * 3.2)(D, D) / D ** 0.5), 'w_phi2': _w((lambda *s: torch.randn(*s, dtype=torch.bfloat16) * 3.2)(D, 3 * D) / D ** 0.5), 'w_rbf': _w((lambda *s: torch.randn(*s, dtype=torch.bfloat16) * 3.2)(n_rbf, 3 * D) / n_rbf ** 0.5)}

def reference(sv, pos, src, dst, freqs, w_phi1, w_phi2, w_rbf):
    N, _, D = sv.shape
    E = src.shape[0]
    PI, cutoff = (3.141592653589793, 5.0)
    s, v = (sv[:, 0, :].clone(), sv[:, 1:, :].clone())
    r_vec = pos[src] - pos[dst]
    d = torch.sqrt((r_vec * r_vec).sum(-1) + 1e-08)
    r_hat = r_vec / d[:, None]
    rbf = torch.sin(d[:, None] * freqs[None, :]) / d[:, None]
    fcut = 0.5 * (torch.cos(PI * d / cutoff) + 1.0)
    fcut = torch.where(d < cutoff, fcut, 0.0 * d)
    Wf = rbf @ w_rbf * fcut[:, None]
    phi = (_silu(s @ w_phi1) @ w_phi2)[src]
    m = phi * Wf
    m_s, m_vv, m_vr = (m[:, :D].clone(), m[:, D:2 * D].clone(), m[:, 2 * D:].clone())
    ds = _segment_sum(m_s, dst, N)
    dv_e = m_vv[:, None, :] * v[src] + m_vr[:, None, :] * r_hat[:, :, None]
    dv = _segment_sum(dv_e.reshape(E, 3 * D), dst, N).reshape(N, 3, D)
    return sv + torch.concatenate([ds[:, None, :], dv], axis=1)
```

```python
import re
class Asm:
    def __init__(self):
        self.lines = []
        self.uid = 0
    def e(self, s):
        for l in s.split('\n'):
            l = l.strip()
            if l: self.lines.append(l)
    def label(self, name): self.lines.append(name + ':')
    def newlabel(self, base='L'):
        self.uid += 1
        return f'{base}_{self.uid}'
    def comment(self, s): self.lines.append('; ' + s)
    def nop(self, n):
        while n > 0:
            k = min(n, 16); self.e(f's_nop {k-1}'); n -= k

RX = re.compile(r'^(-|neg\(|abs\(|\|)?([vsa])(\d+)\)?\|?$')
RR = re.compile(r'^(-)?([vsa])\[(\d+):(\d+)\]$')
def regs(tok):
    tok = tok.strip()
    m = RR.match(tok)
    if m: return {(m.group(2), i) for i in range(int(m.group(3)), int(m.group(4))+1)}
    m = RX.match(tok)
    if m: return {(m.group(2), int(m.group(3)))}
    if tok == 'vcc': return {('s', 106), ('s', 107)}
    if tok == 'vcc_lo': return {('s', 106)}
    if tok == 'vcc_hi': return {('s', 107)}
    if tok == 'exec': return {('s', 126), ('s', 127)}
    if tok in ('exec_lo',): return {('s', 126)}
    if tok in ('exec_hi',): return {('s', 127)}
    if tok == 'm0': return {('s', 124)}
    return set()
TRANS = ('v_exp_f32','v_log_f32','v_rcp_f32','v_rsq_f32','v_sqrt_f32','v_sin_f32','v_cos_f32','v_rcp_iflag_f32')
class Ins:
    def __init__(self, text):
        self.text = text
        t = text.split(';')[0].strip()
        parts = t.split(None, 1)
        self.op = parts[0]
        rest = parts[1] if len(parts) > 1 else ''
        ops = [x.strip() for x in rest.split(',')] if rest else []
        self.mods = ''
        if ops:
            last = ops[-1].split()
            if last:
                ops[-1] = last[0]; self.mods = ' '.join(last[1:])
        self.ops = ops
        op = self.op
        self.is_mfma = op.startswith('v_mfma')
        self.is_valu = op.startswith('v_') and not self.is_mfma
        self.is_trans = any(op.startswith(x) for x in TRANS)
        self.is_vmem = op.startswith('buffer_') or op.startswith('global_') or op.startswith('flat_')
        self.is_ds = op.startswith('ds_')
        self.is_salu = op.startswith('s_')
        self.dst = set(); self.src = set()
        R = [regs(o) for o in ops]
        if self.is_mfma:
            self.dst = R[0]; self.srcA = R[1]; self.srcB = R[2]; self.srcC = R[3] if len(R) > 3 else set()
            self.src = self.srcA | self.srcB | self.srcC
            self.passes = 8 if '32x32x16' in op else (4 if '16x16x32' in op else 16)
        elif self.is_valu:
            if op.startswith('v_cmpx'):
                self.dst = R[0] | regs('exec'); self.src = set().union(*R[1:])
            elif op.startswith('v_cmp'):
                self.dst = R[0]; self.src = set().union(*R[1:])
            elif op.startswith('v_permlane32_swap') or op.startswith('v_permlane16_swap'):
                self.dst = R[0] | R[1]; self.src = R[0] | R[1]
            elif '_co_' in op:
                self.dst = R[0] | R[1]; self.src = set().union(*R[2:])
            else:
                self.dst = R[0]; self.src = set().union(*R[1:]) if len(R) > 1 else set()
                if op.startswith('v_fmac') or op.startswith('v_pk_fmac') or op.startswith('v_dot2c') : self.src |= R[0]
                if op.startswith('v_cndmask') and len(ops) == 3: self.src |= regs('vcc')
                if op.startswith('v_writelane'): self.src |= R[0]
            self.dpp = ('row_' in self.mods or 'quad_perm' in self.mods or 'wave_' in self.mods or 'dpp' in op)
        elif self.is_vmem:
            if 'store' in op or ('atomic' in op and 'sc0' not in self.mods):
                self.src = set().union(*R) if R else set()
                self.store_data = R[0] if op.startswith('buffer_') else (R[1] if len(R) > 1 else set())
            elif 'lds' in self.mods.split():
                self.src = set().union(*R) | regs('m0')
            else:
                self.dst = R[0]; self.src = set().union(*R[1:])
        elif self.is_ds:
            if 'read' in op or 'rtn' in op or 'permute' in op or 'swizzle' in op:
                self.dst = R[0]; self.src = set().union(*R[1:])
            else:
                self.src = set().union(*R)
        elif self.is_salu:
            if op.startswith('s_cmp') or op.startswith('s_bitcmp') or op in ('s_waitcnt','s_nop','s_barrier','s_endpgm','s_branch','s_setprio') or op.startswith('s_cbranch'):
                self.src = set().union(*R) if R else set()
            elif 'saveexec' in op:
                self.dst = R[0] | regs('exec'); self.src = set().union(*R[1:]) | regs('exec')
            else:
                self.dst = R[0] if R else set(); self.src = set().union(*R[1:]) if len(R) > 1 else set()
    def states(self):
        if self.op == 's_nop': return int(self.ops[0], 0) + 1
        return 1
def sg(rs): return {r for r in rs if r[0] == 's'}
def vg(rs): return {r for r in rs if r[0] in 'va'}
def need(p, c):
    n = 0
    if p.is_valu:
        pv = vg(p.dst); ps = sg(p.dst)
        if c.is_mfma and pv & c.src: n = max(n, 2)
        if c.is_vmem and ps & c.src: n = max(n, 5)
        if c.is_valu and ps & c.src and not (c.op.startswith('v_readlane') or c.op.startswith('v_writelane')): n = max(n, 2)
        if (c.op.startswith('v_readlane') or c.op.startswith('v_writelane')) and ps & c.src: n = max(n, 4)
        if (c.op.startswith('v_readlane') or c.op.startswith('v_readfirstlane')) and pv & c.src: n = max(n, 1)
        if c.op.startswith('v_permlane') and pv & c.src: n = max(n, 2)
        if c.is_valu and getattr(c, 'dpp', False) and pv & c.src: n = max(n, 2)
        if p.is_trans and c.is_valu and not c.is_trans and pv & c.src: n = max(n, 1)
        if p.is_trans and (c.is_trans or c.is_vmem or c.is_ds) and pv & c.src: n = max(n, 1)
        if regs('exec') & p.dst:
            if c.is_mfma: n = max(n, 4)
            if c.is_valu and getattr(c, 'dpp', False): n = max(n, 5)
            if c.op.startswith('v_readlane') or c.op.startswith('v_readfirstlane') or c.op.startswith('v_permlane'): n = max(n, 4)
        if c.is_salu and ps & c.src: n = max(n, 1)
    if p.is_mfma:
        tb = {2: (2,4,5,5), 4: (0,6,8,8), 8: (0,10,12,12), 16: (0,18,20,20)}[p.passes]
        if c.is_mfma:
            if p.dst & (c.srcA | c.srcB): n = max(n, tb[2])
            if p.dst & c.srcC:
                n = max(n, tb[0] if (c.srcC == p.dst and c.passes == p.passes) else tb[1])
        elif (c.is_valu or c.is_vmem or c.is_ds) and p.dst & (c.src | c.dst): n = max(n, tb[3])
        if c.is_valu and p.srcC & c.dst: n = max(n, {2:1,4:3,8:7,16:15}[p.passes])
    if p.is_vmem and hasattr(p, 'store_data') and len(p.store_data) >= 3:
        if p.store_data & c.dst: n = max(n, 2)
    if p.is_salu and ('s', 124) in p.dst and (c.is_vmem and 'lds' in c.mods.split()): n = max(n, 1)
    return n
def hazard_pass(lines):
    out = []
    inserted = 0
    for l in lines:
        s = l.split(';')[0].strip()
        if not s or s.endswith(':') or s.startswith('.'):
            out.append((l, None)); continue
        c = Ins(s)
        dist = 0; req = 0
        for (t, p) in reversed(out):
            if p is None: continue
            n = need(p, c)
            if n > dist: req = max(req, n - dist)
            dist += p.states()
            if dist >= 21: break
        if req > 0:
            inserted += 1
            k = req
            while k > 0:
                kk = min(k, 16)
                out.append((f's_nop {kk-1}', Ins(f's_nop {kk-1}'))); k -= kk
        out.append((l, c))
    return [t for t, _ in out], inserted
```

```python
from asmlib import *
N=12500; E=400000
P=50
EPW=E//P
NG=(N+63)//64
NWG1=P+NG
R=250; NPR=50
CS=24
CELL_B=CS*4
CELL_BLK=R*CELL_B
T_SLICE=8000000; CELL_OFF=0x1000000
SENT=0xFFFFFFFF; OVF=0xFFFFFFFE
DBG_OFF=0x2000000
class Cfg:
    stamps=False
class St:
    n=0
def stamp(a):
    if not Cfg.stamps: return
    i=St.n; St.n+=1
    assert i<11
    a.e(f"s_memtime s[{80+2*i}:{81+2*i}]")
def stamp_flush(a, ws_lo, wgreg='s2', kid=0, vt=250):
    if not Cfg.stamps: return
    n=St.n; St.n=0
    a.e("s_mov_b64 exec, -1")
    a.e("s_memrealtime s[78:79]")
    a.e("s_waitcnt lgkmcnt(0)")
    a.e(f"v_mov_b32 v{vt}, 0")
    for i in range(n):
        a.e(f"v_writelane_b32 v{vt}, s{80+2*i}, {i}")
    a.e(f"v_writelane_b32 v{vt}, s78, 15")
    a.e(f"""
s_add_u32 s80, s{ws_lo}, {DBG_OFF+kid*0x100000}
s_addc_u32 s81, s{ws_lo+1}, 0
s_mov_b32 s82, 0x100000
s_mov_b32 s83, 0x20000
s_lshl_b32 s84, {wgreg}, 3
s_add_u32 s84, s84, s3
s_lshl_b32 s84, s84, 8
v_and_b32 v{vt+1}, 63, v0
v_lshlrev_b32 v{vt+1}, 2, v{vt+1}
buffer_store_dword v{vt}, v{vt+1}, s[80:83], s84 offen
""")
def srd(a, d, lo, hi, nbytes):
    a.e(f"s_mov_b32 s{d}, s{lo}\ns_mov_b32 s{d+1}, s{hi}\ns_mov_b32 s{d+2}, {nbytes}\ns_mov_b32 s{d+3}, 0x20000")
KD = """
.amdhsa_kernel {name}
  .amdhsa_next_free_vgpr {v}
  .amdhsa_next_free_sgpr {s}
  .amdhsa_accum_offset {acc}
  .amdhsa_group_segment_fixed_size 0
  .amdhsa_kernarg_size 88
  .amdhsa_user_sgpr_count 2
  .amdhsa_user_sgpr_kernarg_segment_ptr 1
  .amdhsa_system_sgpr_workgroup_id_x 1
.end_amdhsa_kernel
"""
```

```python
from common import *
L_W2=0; L_W1=98304; L_HX=131072;
L_POS=0; L_CELL=100352; L_CNT=L_CELL+24576;
LDS1=147456

def gen_k1(a):
    a.e(f"""
s_cmp_ge_u32 s2, {NWG1}
s_cbranch_scc1 K1_END
s_load_dwordx8 s[8:15], s[0:1], 0
s_load_dwordx4 s[16:19], s[0:1], 40
s_load_dwordx2 s[20:21], s[0:1], 80
v_lshrrev_b32 v1, 6, v0
v_readfirstlane_b32 s3, v1
v_and_b32 v1, 63, v0
s_cmp_lt_u32 s2, {P}
s_cbranch_scc1 K1_EDGE
s_sub_u32 s7, s2, {P}
s_cmp_ge_u32 s3, 4
s_cbranch_scc1 K1_HELP
s_waitcnt lgkmcnt(0)
""")
    gen_gemm(a)
    a.e("s_endpgm")
    a.label("K1_HELP")
    a.e("s_waitcnt lgkmcnt(0)")
    gen_help(a)
    a.e("s_endpgm")
    a.label("K1_EDGE")
    a.e("s_waitcnt lgkmcnt(0)")
    gen_edge(a)
    a.label("K1_END")
    a.e("s_endpgm")

def gen_help(a):
    srd(a,40,16,17,32768); srd(a,44,18,19,98304)
    stamp(a)
    a.e(f"""
v_subrev_u32 v2, 256, v0
v_lshrrev_b32 v5, 4, v1
v_lshrrev_b32 v6, 2, v1
v_and_b32 v6, 3, v6
v_xor_b32 v6, v6, v5
v_lshlrev_b32 v6, 6, v6
v_lshlrev_b32 v7, 8, v5
v_add_u32 v6, v6, v7
v_and_b32 v7, 3, v1
v_lshlrev_b32 v7, 4, v7
v_add_u32 v6, v6, v7
s_sub_u32 s56, s3, 4
s_lshl_b32 s56, s56, 13
""")
    for i in range(8):
        a.e(f"""
s_add_u32 s57, s56, {i*1024}
s_add_u32 s58, s57, {L_W1}
s_mov_b32 m0, s58
s_nop 0
buffer_load_dwordx4 v6, s[40:43], s57 offen lds
""")
    a.e("""
v_lshrrev_b32 v7, 4, v2
v_mul_u32_u24 v8, 768, v7
v_and_b32 v9, 15, v2
v_lshlrev_b32 v10, 4, v9
v_add_u32 v8, v8, v10
""")
    order=[1,0,2]
    u=0
    for X in order:
        for ii in range(8):
            b=64+4*u
            a.e(f"s_mov_b32 s57, {ii*12288}")
            a.e(f"buffer_load_dwordx4 v[{b}:{b+3}], v8, s[44:47], s57 offen offset:{X*256}")
            u+=1
    a.e(f"""
v_mul_u32_u24 v10, 768, v7
v_lshrrev_b32 v11, 3, v9
v_and_b32 v12, 3, v7
v_xor_b32 v11, v11, v12
v_lshlrev_b32 v11, 6, v11
v_add_u32 v10, v10, v11
v_and_b32 v11, 7, v9
v_lshlrev_b32 v11, 3, v11
v_add_u32 v10, v10, v11
v_xor_b32 v11, 128, v10
v_add_u32 v12, {4*12288}, v10
v_add_u32 v13, {4*12288}, v11
s_mov_b32 s60, 0x05040100
s_mov_b32 s61, 0x07060302
s_waitcnt vmcnt(24)
""")
    stamp(a)
    a.e("s_barrier")
    u=0
    for X in order:
        for ii in range(8):
            b=64+4*u
            a.e(f"s_waitcnt vmcnt({23-u})")
            t=48+4*(u&3)
            a.e(f"""
v_perm_b32 v{t}, v{b+1}, v{b}, s60
v_perm_b32 v{t+1}, v{b+3}, v{b+2}, s60
v_perm_b32 v{t+2}, v{b+1}, v{b}, s61
v_perm_b32 v{t+3}, v{b+3}, v{b+2}, s61
""")
            ae,ao=(10,11) if ii<4 else (12,13)
            off=L_W2+(ii&3)*12288+X*256
            a.e(f"ds_write_b64 v{ae}, v[{t}:{t+1}] offset:{off}")
            a.e(f"ds_write_b64 v{ao}, v[{t+2}:{t+3}] offset:{off}")
            u+=1
    a.e("s_waitcnt lgkmcnt(0)")
    stamp(a)
    a.e("s_barrier")
    stamp(a)
    stamp_flush(a,20)

def gen_gemm(a):
    srd(a,24,8,9,N*1024)
    a.e(f"""
s_lshr_b32 s4, s3, 1
s_and_b32 s5, s3, 1
s_lshl_b32 s6, s7, 6
s_lshl_b32 s57, s4, 5
s_add_u32 s6, s6, s57
s_mul_i32 s57, s5, {T_SLICE}
s_add_u32 s22, s20, s57
s_addc_u32 s23, s21, 0
""")
    srd(a,48,22,23,T_SLICE)
    a.e(f"""
v_and_b32 v2, 31, v1
v_lshrrev_b32 v3, 5, v1
v_add_u32 v4, s6, v2
v_lshlrev_b32 v4, 10, v4
v_lshlrev_b32 v5, 4, v3
v_add_u32 v4, v4, v5
""")
    stamp(a)
    for t in range(8):
        a.e(f"buffer_load_dwordx4 v[{16+4*t}:{19+4*t}], v4, s[24:27], 0 offen offset:{32*t}")
    a.e(f"""
v_lshlrev_b32 v4, 2, v3
v_add_u32 v4, s6, v4
v_lshlrev_b32 v5, 10, v4
v_lshlrev_b32 v6, 2, v2
v_add_u32 v5, v5, v6
s_lshl_b32 s57, s5, 7
v_add_u32 v5, s57, v5
v_mul_u32_u24 v6, 640, v4
v_lshlrev_b32 v7, 2, v2
v_add_u32 v7, v6, v7
v_lshlrev_b32 v8, 4, v2
v_add_u32 v6, v6, v8
v_and_b32 v8, 15, v1
v_lshrrev_b32 v9, 2, v8
v_and_b32 v8, 3, v8
v_lshlrev_b32 v8, 3, v8
v_lshrrev_b32 v10, 4, v1
v_and_b32 v10, 1, v10
v_lshlrev_b32 v10, 5, v10
v_add_u32 v8, v8, v10
v_lshlrev_b32 v10, 3, v3
v_add_u32 v10, v10, v9
v_lshlrev_b32 v10, 8, v10
v_add_u32 v10, v10, v8
v_add_u32 v10, {L_W1}, v10
s_lshl_b32 s57, s5, 1
v_xor_b32 v11, s57, v9
v_lshlrev_b32 v12, 6, v11
v_add_u32 v12, v10, v12
v_xor_b32 v11, 1, v11
v_lshlrev_b32 v13, 6, v11
v_add_u32 v13, v10, v13
v_lshlrev_b32 v10, 2, v3
v_add_u32 v10, v10, v9
v_mul_u32_u24 v10, 768, v10
v_add_u32 v10, v10, v8
v_xor_b32 v11, s5, v9
v_lshlrev_b32 v11, 6, v11
v_add_u32 v14, v10, v11
v_xor_b32 v15, 128, v14
v_add_u32 v240, {4*12288}, v14
v_add_u32 v241, {4*12288}, v15
s_barrier
""")
    stamp(a)
    for r in range(16):
        nd = 8*(r>>2)+(r&3)
        a.e(f"s_mov_b32 s57, {nd*1024}")
        for c in range(3):
            a.e(f"buffer_load_dword v{192+3*r+c}, v5, s[24:27], s57 offen offset:{(1+c)*256}")
    a.e("s_waitcnt vmcnt(48)")
    stamp(a)
    seq=[(mt,t) for mt in range(2) for t in range(8)]
    def rd1(idx):
        mt,t=seq[idx]; f=48+4*(idx%4); base=12+mt
        a.e(f"ds_read_b64_tr_b16 v[{f}:{f+1}], v{base} offset:{t*4096}")
        a.e(f"ds_read_b64_tr_b16 v[{f+2}:{f+3}], v{base} offset:{t*4096+1024}")
    for i in range(3): rd1(i)
    for i,(mt,t) in enumerate(seq):
        if i+3<16: rd1(i+3)
        outst = min(3, 15-i)*2
        a.e(f"s_waitcnt lgkmcnt({outst})")
        f=48+4*(i%4); D=160+16*mt
        c = '0' if t==0 else f"v[{D}:{D+15}]"
        a.e(f"v_mfma_f32_32x32x16_bf16 v[{D}:{D+15}], v[{f}:{f+3}], v[{16+4*t}:{19+4*t}], {c}")
    stamp(a)
    a.e("s_mov_b32 s60, 0xbfb8aa3b\ns_mov_b32 s61, 0xffff0000")
    for mt in range(2):
        for pr in range(8):
            x0=160+16*mt+2*pr; x1=x0+1
            t0=48+6*(pr&1)
            a.e(f"""
v_cvt_pk_bf16_f32 v{t0}, v{x0}, v{x1}
v_lshlrev_b32 v{x0}, 16, v{t0}
v_and_b32 v{x1}, s61, v{t0}
v_mul_f32 v{t0+1}, s60, v{x0}
v_mul_f32 v{t0+2}, s60, v{x1}
v_exp_f32 v{t0+1}, v{t0+1}
v_exp_f32 v{t0+2}, v{t0+2}
v_add_f32 v{t0+1}, 1.0, v{t0+1}
v_add_f32 v{t0+2}, 1.0, v{t0+2}
v_rcp_f32 v{t0+1}, v{t0+1}
v_rcp_f32 v{t0+2}, v{t0+2}
v_mul_f32 v{x0}, v{x0}, v{t0+1}
v_mul_f32 v{x1}, v{x1}, v{t0+2}
v_cvt_pk_bf16_f32 v{16+8*mt+pr}, v{x0}, v{x1}
""")
    a.e(f"""
v_lshlrev_b32 v8, 4, v1
s_lshl_b32 s57, s4, 13
s_add_u32 s57, s57, {L_HX}
v_add_u32 v9, s57, v8
s_lshl_b32 s58, s5, 12
v_add_u32 v8, s58, v9
""")
    for f in range(4):
        a.e(f"ds_write_b128 v8, v[{16+4*f}:{19+4*f}] offset:{f*1024}")
    a.e("s_waitcnt lgkmcnt(0)")
    stamp(a)
    a.e("s_barrier")
    stamp(a)
    for ks in range(8):
        a.e(f"ds_read_b128 v[{16+4*ks}:{19+4*ks}], v9 offset:{ks*1024}")
    tiles=[(1,0),(1,1),(0,0),(0,1),(2,0),(2,1)]
    seq=[(ti,ks) for ti in range(6) for ks in range(8)]
    def rd2(idx):
        ti,ks=seq[idx]; X,p=tiles[ti]; f=48+4*(idx%4)
        base = (14+p) if ks<4 else (240+p)
        off=(ks&3)*12288+X*256
        a.e(f"ds_read_b64_tr_b16 v[{f}:{f+1}], v{base} offset:{off}")
        a.e(f"ds_read_b64_tr_b16 v[{f+2}:{f+3}], v{base} offset:{off+6144}")
    for i in range(3): rd2(i)
    for i,(ti,ks) in enumerate(seq):
        if i+3<48: rd2(i+3)
        outst=min(3,47-i)*2
        a.e(f"s_waitcnt lgkmcnt({outst})")
        f=48+4*(i%4); D=64+16*ti
        c='0' if ks==0 else f"v[{D}:{D+15}]"
        a.e(f"v_mfma_f32_32x32x16_bf16 v[{D}:{D+15}], v[{16+4*ks}:{19+4*ks}], v[{f}:{f+3}], {c}")
    stamp(a)
    a.e("s_waitcnt vmcnt(0)")
    stamp(a)
    VV_E,VV_O,S_E,S_O,VR_E,VR_O=64,80,96,112,128,144
    def epi(r):
        q=160+8*(r&3)
        t=48+8*(r&1)
        nd=8*(r>>2)+(r&3)
        a.e(f"""
v_cvt_pk_bf16_f32 v{q}, v{S_E+r}, v{S_O+r}
v_cvt_pk_bf16_f32 v{q+1}, v{VR_E+r}, v{VR_O+r}
v_cvt_pk_bf16_f32 v{t}, v{VV_E+r}, v{VV_O+r}
v_and_b32 v{t+1}, s61, v{t}
v_lshlrev_b32 v{t}, 16, v{t}
""")
        for c in range(3):
            vd=192+3*r+c
            dst = q+2+c
            a.e(f"""
v_lshlrev_b32 v{t+2+2*c}, 16, v{vd}
v_and_b32 v{t+3+2*c}, s61, v{vd}
v_pk_mul_f32 v[{t+2+2*c}:{t+3+2*c}], v[{t+2+2*c}:{t+3+2*c}], v[{t}:{t+1}]
v_cvt_pk_bf16_f32 v{dst}, v{t+2+2*c}, v{t+3+2*c}
""")
        a.e(f"""
s_mov_b32 s57, {nd*640}
buffer_store_dwordx4 v[{q}:{q+3}], v6, s[48:51], s57 offen
buffer_store_dword v{q+4}, v7, s[48:51], s57 offen offset:512
""")
    for r in range(16): epi(r)
    stamp(a)
    if Cfg.stamps: a.e("s_waitcnt vmcnt(0)")
    stamp(a)
    stamp_flush(a,20)

def gen_edge(a):
    srd(a,28,10,11,N*6); srd(a,32,12,13,E*4); srd(a,36,14,15,E*4)
    a.e(f"s_add_u32 s22, s20, {CELL_OFF}\ns_addc_u32 s23, s21, 0")
    srd(a,52,22,23,P*CELL_BLK)
    stamp(a)
    NCH=EPW//4
    NR=(NCH+511)//512
    a.e(f"""
v_lshlrev_b32 v3, 4, v0
s_mul_i32 s4, s2, {EPW*4}
""")
    for i in range(NR):
        a.e(f"s_add_u32 s5, s4, {i*8192}")
        a.e(f"buffer_load_dwordx4 v[{16+4*i}:{19+4*i}], v3, s[32:35], s5 offen")
        a.e(f"buffer_load_dwordx4 v[{32+4*i}:{35+4*i}], v3, s[36:39], s5 offen")
    NPR_=(N//2+511)//512
    a.e("v_mul_u32_u24 v4, 12, v0")
    for i in range(NPR_):
        b=64+4*i
        a.e(f"s_mov_b32 s5, {i*512*12}")
        a.e(f"buffer_load_dwordx3 v[{b}:{b+2}], v4, s[28:31], s5 offen")
    a.e(f"""
v_mov_b32 v4, -1
v_mov_b32 v5, -1
v_mov_b32 v6, -1
v_mov_b32 v7, -1
v_add_u32 v8, {L_CELL}, v3
ds_write_b128 v8, v[4:7]
ds_write_b128 v8, v[4:7] offset:8192
ds_write_b128 v8, v[4:7] offset:16384
v_mov_b32 v9, 0
v_lshlrev_b32 v10, 2, v0
v_add_u32 v10, {L_CNT}, v10
ds_write_b32 v10, v9
s_mov_b32 s61, 0xffff0000
""")
    for i in range(NPR_):
        b=64+4*i
        a.e(f"s_waitcnt vmcnt({NPR_-1-i})")
        t=120+4*(i&1)
        a.e(f"""
v_mov_b32 v{t}, v{b}
v_lshlrev_b32 v{t+1}, 16, v{b+1}
v_alignbit_b32 v{t+2}, v{b+2}, v{b+1}, 16
v_and_b32 v{t+3}, s61, v{b+2}
""")
        if i==NPR_-1:
            a.e(f"v_cmp_gt_u32 vcc, {N//2-512*i}, v0\ns_and_saveexec_b64 s[62:63], vcc")
        if i*8192 < 65536:
            a.e(f"ds_write_b128 v3, v[{t}:{t+3}] offset:{i*8192}")
        else:
            a.e(f"v_add_u32 v11, {i*8192}, v3\nds_write_b128 v11, v[{t}:{t+3}]")
        if i==NPR_-1:
            a.e("s_mov_b64 exec, s[62:63]")
    a.e("s_waitcnt lgkmcnt(0)")
    stamp(a)
    a.e("s_barrier")
    stamp(a)
    a.e(f"s_mov_b32 s60, 0x41c1999a")
    a.e(f"s_mov_b32 s59, {L_CNT}")
    a.e(f"v_mov_b32 v9, 1\nv_mov_b32 v13, s59\ns_mov_b32 s58, {OVF}\nv_mov_b32 v14, s58")
    for i in range(NR):
        for e in range(4):
            a.e(f"""
v_lshlrev_b32 v10, 3, v{16+4*i+e}
v_lshlrev_b32 v11, 3, v{32+4*i+e}
ds_read_b64 v[{64+4*e}:{65+4*e}], v10
ds_read_b64 v[{66+4*e}:{67+4*e}], v11
""")
        if i==NR-1:
            a.e(f"s_mov_b32 s57, {NCH-512*i}\nv_cmp_gt_u32 s[62:63], s57, v0")
        for e in range(4):
            b=64+4*e
            a.e(f"s_waitcnt lgkmcnt({6-2*e})")
            a.e(f"""
v_lshlrev_b32 v80, 16, v{b}
v_and_b32 v81, s61, v{b}
v_lshlrev_b32 v82, 16, v{b+2}
v_and_b32 v83, s61, v{b+2}
v_sub_f32 v80, v80, v82
v_sub_f32 v81, v81, v83
v_sub_f32 v82, v{b+1}, v{b+3}
v_mul_f32 v80, v80, v80
v_fmac_f32 v80, v81, v81
v_fmac_f32 v80, v82, v82
v_cmp_gt_f32 s[{64+2*e}:{65+2*e}], s60, v80
""")
            d=32+4*i+e; s_=16+4*i+e
            a.e(f"""
v_mul_u32_u24 v10, 5243, v{d}
v_lshrrev_b32 v{84+e}, 18, v10
v_mul_u32_u24 v11, 50, v{84+e}
v_sub_u32 v11, v{d}, v11
v_lshl_or_b32 v{s_}, v11, 14, v{s_}
""")
            if i==NR-1:
                a.e(f"s_and_b64 s[{64+2*e}:{65+2*e}], s[{64+2*e}:{65+2*e}], s[62:63]")
        for e in range(4):
            a.e(f"""
s_mov_b64 exec, s[{64+2*e}:{65+2*e}]
v_lshl_add_u32 v10, v{84+e}, 2, v13
ds_add_rtn_u32 v{88+e}, v10, v9
""")
        a.e("s_waitcnt lgkmcnt(0)")
        for e in range(4):
            s_=16+4*i+e
            a.e(f"""
s_mov_b64 exec, s[{64+2*e}:{65+2*e}]
v_cmp_gt_u32 vcc, {CS-1}, v{88+e}
v_min_u32 v10, {CS-1}, v{88+e}
v_mul_u32_u24 v11, {CELL_B}, v{84+e}
v_cndmask_b32 v12, v14, v{s_}, vcc
v_lshl_add_u32 v11, v10, 2, v11
ds_write_b32 v11, v12 offset:0
""".replace("ds_write_b32 v11, v12 offset:0", f"v_add_u32 v11, {L_CELL}, v11\nds_write_b32 v11, v12"))
        a.e("s_mov_b64 exec, -1")
    a.e("s_waitcnt lgkmcnt(0)")
    stamp(a)
    a.e(f"""
s_barrier
ds_read_b128 v[16:19], v8
ds_read_b128 v[20:23], v8 offset:8192
ds_read_b128 v[24:27], v8 offset:16384
s_mul_i32 s4, s2, {CELL_BLK}
s_waitcnt lgkmcnt(0)
buffer_store_dwordx4 v[16:19], v3, s[52:55], s4 offen
s_add_u32 s5, s4, 8192
buffer_store_dwordx4 v[20:23], v3, s[52:55], s5 offen
s_add_u32 s5, s4, 16384
v_cmp_gt_u32 vcc, {CELL_BLK//16-1024}, v0
s_and_saveexec_b64 s[62:63], vcc
s_cbranch_execz K1_EDONE
buffer_store_dwordx4 v[24:27], v3, s[52:55], s5 offen
""")
    a.label("K1_EDONE")
    stamp(a)
    if Cfg.stamps: a.e("s_mov_b64 exec, -1\ns_waitcnt vmcnt(0)")
    stamp(a)
    stamp_flush(a,20)

if __name__=='__main__':
    import sys
    Cfg.stamps = len(sys.argv)>1
    a=Asm(); gen_k1(a)
    lines,n=hazard_pass(a.lines)
    hdr=f"""; k1 test
; @launch kernel=painn_k1_kernel grid=({NWG1},1,1) block=(512,1,1) lds={LDS1}
.amdgcn_target "amdgcn-amd-amdhsa--gfx950"
.text
.globl painn_k1_kernel
.p2align 8
.type painn_k1_kernel,@function
painn_k1_kernel:
"""
    tail='\n.section .rodata,"a"\n.p2align 6'+KD.format(name='painn_k1_kernel',v=256,s=102,acc=256)
    open('k1.s','w').write(hdr+'\n'.join(lines)+tail)
    print('nops',n,'lines',len(lines))
```

```python
from common import *
CAP=512
D=8
L_RES=0
L_SCAL=25600
L_OFF=L_SCAL+16384
L_REC=L_OFF+2304
L_CNT=L_REC+2048
L_END=L_CNT+256
L_FLAG=L_END+1280
LDS2=L_FLAG+64
OOB=0x80000000
NWG2=504
NCHK=P*(CS//4)

W=16
ACC=40
RING=48
UZ=80
SC=88
TMP=104

def emit_scalars(a, vs, vd, out, t, zero_mask=None):
    x,y,z=t,t+1,t+2
    a.e(f"""
v_sub_f32 v{x}, v{t}, v{t+3}
v_sub_f32 v{y}, v{t+1}, v{t+4}
v_sub_f32 v{z}, v{t+2}, v{t+5}
v_cvt_pk_bf16_f32 v{t+3}, v{x}, v{y}
v_cvt_pk_bf16_f32 v{t+4}, v{z}, v{z}
v_lshlrev_b32 v{x}, 16, v{t+3}
v_and_b32 v{y}, s61, v{t+3}
v_lshlrev_b32 v{z}, 16, v{t+4}
v_mul_f32 v{t+3}, v{x}, v{x}
v_mul_f32 v{t+4}, v{y}, v{y}
v_mul_f32 v{t+5}, v{z}, v{z}
v_cvt_pk_bf16_f32 v{t+6}, v{t+3}, v{t+4}
v_cvt_pk_bf16_f32 v{t+7}, v{t+5}, v{t+5}
v_lshlrev_b32 v{t+3}, 16, v{t+6}
v_and_b32 v{t+4}, s61, v{t+6}
v_lshlrev_b32 v{t+5}, 16, v{t+7}
v_add_f32 v{t+3}, v{t+3}, v{t+4}
v_add_f32 v{t+3}, v{t+3}, v{t+5}
v_cvt_pk_bf16_f32 v{t+3}, v{t+3}, v{t+3}
v_lshlrev_b32 v{t+3}, 16, v{t+3}
v_add_f32 v{t+3}, s44, v{t+3}
v_cvt_pk_bf16_f32 v{t+3}, v{t+3}, v{t+3}
v_lshlrev_b32 v{t+3}, 16, v{t+3}
v_sqrt_f32 v{t+3}, v{t+3}
v_cvt_pk_bf16_f32 v{t+3}, v{t+3}, v{t+3}
v_lshlrev_b32 v{t+3}, 16, v{t+3}
v_rcp_f32 v{t+4}, v{t+3}
""")
    a.e(f"""
v_mul_f32 v{x}, v{x}, v{t+4}
v_mul_f32 v{y}, v{y}, v{t+4}
v_mul_f32 v{z}, v{z}, v{t+4}
v_cvt_pk_bf16_f32 v{t+5}, v{x}, v{y}
v_cvt_pk_bf16_f32 v{t+6}, v{z}, v{z}
v_lshlrev_b32 v{out+4}, 16, v{t+5}
v_and_b32 v{out+5}, s61, v{t+5}
v_lshlrev_b32 v{out+6}, 16, v{t+6}
""")
    a.e(f"""
v_mul_f32 v{t+5}, s45, v{t+3}
v_cvt_pk_bf16_f32 v{t+5}, v{t+5}, v{t+5}
v_lshlrev_b32 v{t+5}, 16, v{t+5}
v_mul_f32 v{t+5}, s46, v{t+5}
v_cvt_pk_bf16_f32 v{t+5}, v{t+5}, v{t+5}
v_lshlrev_b32 v{t+5}, 16, v{t+5}
v_mul_f32 v{t+5}, 0.15915494, v{t+5}
v_cos_f32 v{t+5}, v{t+5}
v_cvt_pk_bf16_f32 v{t+5}, v{t+5}, v{t+5}
v_lshlrev_b32 v{t+5}, 16, v{t+5}
v_add_f32 v{t+5}, 1.0, v{t+5}
v_cvt_pk_bf16_f32 v{t+5}, v{t+5}, v{t+5}
v_lshlrev_b32 v{t+5}, 16, v{t+5}
v_mul_f32 v{t+5}, 0.5, v{t+5}
v_cmp_gt_f32 vcc, s47, v{t+3}
v_cndmask_b32 v{t+5}, 0, v{t+5}, vcc
""")
    for k in range(0,4,2):
        p,q=t+6,t+7
        a.e(f"""
v_mul_f32 v{p}, s{40+k}, v{t+3}
v_mul_f32 v{q}, s{41+k}, v{t+3}
v_cvt_pk_bf16_f32 v{t+8}, v{p}, v{q}
v_lshlrev_b32 v{p}, 16, v{t+8}
v_and_b32 v{q}, s61, v{t+8}
v_mul_f32 v{p}, 0.15915494, v{p}
v_mul_f32 v{q}, 0.15915494, v{q}
v_fract_f32 v{p}, v{p}
v_fract_f32 v{q}, v{q}
v_sin_f32 v{p}, v{p}
v_sin_f32 v{q}, v{q}
v_cvt_pk_bf16_f32 v{t+8}, v{p}, v{q}
v_lshlrev_b32 v{p}, 16, v{t+8}
v_and_b32 v{q}, s61, v{t+8}
v_mul_f32 v{p}, v{p}, v{t+4}
v_mul_f32 v{q}, v{q}, v{t+4}
v_cvt_pk_bf16_f32 v{t+8}, v{p}, v{q}
v_lshlrev_b32 v{p}, 16, v{t+8}
v_and_b32 v{q}, s61, v{t+8}
v_mul_f32 v{out+k}, v{p}, v{t+5}
v_mul_f32 v{out+k+1}, v{q}, v{t+5}
""")

def emit_posext(a, idx, lo, o, t):
    a.e(f"""
v_and_b32 v{t}, 1, v{idx}
v_lshlrev_b32 v{t}, 4, v{t}
v_alignbit_b32 v{t+1}, v{lo+1}, v{lo}, v{t}
v_lshrrev_b32 v{t}, v{t}, v{lo+1}
v_lshlrev_b32 v{o}, 16, v{t+1}
v_and_b32 v{o+1}, s61, v{t+1}
v_lshlrev_b32 v{o+2}, 16, v{t}
""")

def emit_step(a, q, uz, sc):
    t=TMP
    srcs=[q,q+1,q+2,q+3,uz]
    for i,sreg in enumerate(srcs):
        a.e(f"v_lshlrev_b32 v{t+2*i}, 16, v{sreg}\nv_and_b32 v{t+2*i+1}, s61, v{sreg}")
    for X in range(3):
        d=t+10+2*X
        for k in range(4):
            ap=sc+(k&~1); sel=k&1
            w=W+8*X+2*k
            if k==0:
                a.e(f"v_pk_mul_f32 v[{d}:{d+1}], v[{ap}:{ap+1}], v[{w}:{w+1}] op_sel:[{sel},0] op_sel_hi:[{sel},1]")
            else:
                a.e(f"v_pk_fma_f32 v[{d}:{d+1}], v[{ap}:{ap+1}], v[{w}:{w+1}], v[{d}:{d+1}] op_sel:[{sel},0,0] op_sel_hi:[{sel},1,1]")
    WS,WVV,WVR=t+10,t+12,t+14
    a.e(f"v_pk_fma_f32 v[{ACC}:{ACC+1}], v[{t}:{t+1}], v[{WS}:{WS+1}], v[{ACC}:{ACC+1}]")
    a.e(f"v_pk_mul_f32 v[{t+2}:{t+3}], v[{t+2}:{t+3}], v[{WVR}:{WVR+1}]")
    for c in range(3):
        ac=ACC+2+2*c; u=t+4+2*c
        a.e(f"v_pk_fma_f32 v[{ac}:{ac+1}], v[{u}:{u+1}], v[{WVV}:{WVV+1}], v[{ac}:{ac+1}]")
    for c in range(3):
        ac=ACC+2+2*c
        rp=sc+4+(c&~1); sel=c&1
        a.e(f"v_pk_fma_f32 v[{ac}:{ac+1}], v[{rp}:{rp+1}], v[{t+2}:{t+3}], v[{ac}:{ac+1}] op_sel:[{sel},0,0] op_sel_hi:[{sel},1,1]")

def emit_finalize(a):
    t=TMP
    a.e(f"""
s_lshl_b32 s52, s50, 9
v_add_u32 v{t+8}, s52, v4
ds_read_b32 v{t+4}, v{t+8}
ds_read_b32 v{t+5}, v{t+8} offset:128
v_permlane32_swap_b32 v{ACC}, v{ACC+4}
v_permlane32_swap_b32 v{ACC+1}, v{ACC+5}
v_permlane32_swap_b32 v{ACC+2}, v{ACC+6}
v_permlane32_swap_b32 v{ACC+3}, v{ACC+7}
v_pk_add_f32 v[{ACC}:{ACC+1}], v[{ACC}:{ACC+1}], v[{ACC+4}:{ACC+5}]
v_pk_add_f32 v[{ACC+2}:{ACC+3}], v[{ACC+2}:{ACC+3}], v[{ACC+6}:{ACC+7}]
s_waitcnt lgkmcnt(0)
v_lshlrev_b32 v{t}, 16, v{t+4}
v_and_b32 v{t+1}, s61, v{t+4}
v_lshlrev_b32 v{t+2}, 16, v{t+5}
v_and_b32 v{t+3}, s61, v{t+5}
v_pk_add_f32 v[{t}:{t+1}], v[{t}:{t+1}], v[{ACC}:{ACC+1}]
v_pk_add_f32 v[{t+2}:{t+3}], v[{t+2}:{t+3}], v[{ACC+2}:{ACC+3}]
v_cvt_pk_bf16_f32 v{t+6}, v{t}, v{t+1}
v_cvt_pk_bf16_f32 v{t+7}, v{t+2}, v{t+3}
buffer_store_dword v{t+6}, v5, s[24:27], s51 offen
buffer_store_dword v{t+7}, v5, s[24:27], s51 offen offset:256
""")
    for i in range(8): a.e(f"v_mov_b32 v{ACC+i}, 0")
    a.e("s_add_u32 s50, s50, 1\ns_add_u32 s51, s51, 1024")

def gen_k2(a):
    a.e(f"""
s_cmp_ge_u32 s2, {NWG2}
s_cbranch_scc1 K2_END
s_and_b32 s4, s2, 7
s_and_b32 s5, s4, 1
s_lshr_b32 s4, s4, 1
s_mul_i32 s4, s4, 63
s_lshr_b32 s6, s2, 3
s_add_u32 s4, s4, s6
s_cmp_ge_u32 s4, {R}
s_cbranch_scc1 K2_END
s_load_dwordx8 s[8:15], s[0:1], 0
s_load_dwordx2 s[16:17], s[0:1], 32
s_load_dwordx4 s[68:71], s[0:1], 56
s_load_dwordx2 s[20:21], s[0:1], 80
v_lshrrev_b32 v1, 6, v0
v_readfirstlane_b32 s3, v1
v_and_b32 v1, 63, v0
v_and_b32 v2, 31, v1
v_lshrrev_b32 v3, 5, v1
s_waitcnt lgkmcnt(0)
s_load_dwordx2 s[18:19], s[16:17], 0
""")
    srd(a,24,70,71,N*1024); srd(a,28,10,11,N*6)
    a.e(f"s_mul_i32 s7, s5, {T_SLICE}\ns_add_u32 s22, s20, s7\ns_addc_u32 s23, s21, 0")
    srd(a,32,22,23,T_SLICE)
    a.e(f"s_add_u32 s22, s20, {CELL_OFF}\ns_addc_u32 s23, s21, 0")
    srd(a,36,22,23,P*CELL_BLK)
    srd(a,56,8,9,N*1024); srd(a,72,68,69,3072)
    stamp(a)
    a.e(f"""
v_mul_u32_u24 v4, 10923, v0
v_lshrrev_b32 v4, 16, v4
v_mul_u32_u24 v5, 6, v4
v_sub_u32 v5, v0, v5
v_mul_u32_u24 v6, {CELL_BLK}, v4
v_lshl_add_u32 v6, v5, 4, v6
s_mul_i32 s7, s4, {CELL_B}
v_mov_b32 v96, -1
v_mov_b32 v97, -1
v_mov_b32 v98, -1
v_mov_b32 v99, -1
s_mov_b32 s52, {NCHK}
v_cmp_gt_u32 s[62:63], s52, v0
s_mov_b64 exec, s[62:63]
s_cbranch_execz K2_NOCELL
buffer_load_dwordx4 v[96:99], v6, s[36:39], s7 offen
""")
    a.label("K2_NOCELL")
    a.e("s_mov_b64 exec, -1")
    a.e("v_mov_b32 v100, v5")
    a.e(f"""
v_lshlrev_b32 v7, 2, v2
s_lshl_b32 s7, s5, 7
""")
    for X in range(3):
        for k in range(4):
            a.e(f"buffer_load_dword v{104+X*4+k}, v7, s[72:75], s7 offen offset:{k*768+X*256}")
    a.e(f"""
v_lshrrev_b32 v8, 5, v1
v_lshlrev_b32 v8, 10, v8
v_lshrrev_b32 v9, 3, v1
v_and_b32 v9, 3, v9
v_lshl_add_u32 v8, v9, 8, v8
v_and_b32 v9, 7, v1
v_lshl_add_u32 v8, v9, 4, v8
s_mul_i32 s52, s4, {NPR*1024}
s_lshl_b32 s53, s5, 7
s_add_u32 s52, s52, s53
s_lshl_b32 s53, s3, 11
s_add_u32 s52, s52, s53
s_lshl_b32 s53, s3, 10
""")
    for i in range(3):
        a.e(f"""
s_add_u32 s54, s53, {L_RES+i*8192}
s_mov_b32 m0, s54
s_add_u32 s55, s52, {i*16384}
buffer_load_dwordx4 v8, s[56:59], s55 offen lds
""")
    a.e(f"""
s_cmp_lg_u32 s3, 0
s_cbranch_scc1 K2_NOD4
s_mov_b32 m0, {L_RES+24576}
s_add_u32 s55, s52, {3*16384}
buffer_load_dwordx4 v8, s[56:59], s55 offen lds
""")
    a.label("K2_NOD4")
    a.e(f"""
v_lshlrev_b32 v9, 2, v0
s_mov_b32 s52, {OOB}
v_mov_b32 v10, s52
v_mov_b32 v11, -1
v_mov_b32 v12, 0
ds_write_b32 v9, v10 offset:{L_OFF}
ds_write_b32 v9, v11 offset:{L_REC}
s_mov_b32 s52, 64
v_cmp_gt_u32 vcc, s52, v0
s_and_saveexec_b64 s[62:63], vcc
ds_write_b32 v9, v10 offset:{L_OFF+2048}
ds_write_b32 v9, v12 offset:{L_CNT}
ds_write_b32 v9, v12 offset:{L_END+1024}
ds_write_b32 v9, v12 offset:{L_FLAG}
s_mov_b64 exec, s[62:63]
s_movk_i32 s52, 256
v_cmp_gt_u32 vcc, s52, v0
s_and_saveexec_b64 s[62:63], vcc
ds_write_b32 v9, v12 offset:{L_END}
s_mov_b64 exec, s[62:63]
s_mov_b32 s61, 0xffff0000
""")
    a.e("""
s_waitcnt lgkmcnt(0)
s_lshl_b32 s40, s18, 16
s_and_b32 s41, s18, s61
s_lshl_b32 s42, s19, 16
s_and_b32 s43, s19, s61
s_mov_b32 s44, 0x322bcc77
s_mov_b32 s45, 0x40490fdb
s_mov_b32 s46, 0x3e4ccccd
s_mov_b32 s47, 0x40a00000
s_barrier
""")
    stamp(a)
    ndma=3
    a.e(f"s_waitcnt vmcnt({12+3})")
    stamp(a)
    a.e("v_mov_b32 v9, 1")
    a.e(f"""
v_cmp_eq_u32 vcc, 5, v100
v_cmp_ne_u32 s[62:63], -1, v99
s_and_b64 vcc, vcc, s[62:63]
s_and_saveexec_b64 s[62:63], vcc
ds_write_b32 v12, v9 offset:{L_FLAG}
v_mov_b32 v99, -1
s_mov_b64 exec, s[62:63]
""")
    for e in range(4):
        a.e(f"""
v_cmp_ne_u32 s[{64+0}:{65+0}], -1, v{96+e}
s_mov_b64 exec, s[64:65]
v_lshrrev_b32 v10, 14, v{96+e}
v_lshlrev_b32 v10, 2, v10
ds_add_rtn_u32 v{120+e}, v10, v9 offset:{L_CNT}
s_mov_b64 exec, -1
""")
    a.e("s_waitcnt lgkmcnt(0)\ns_barrier")
    stamp(a)
    a.e(f"""
v_lshlrev_b32 v9, 2, v1
ds_read_b32 v10, v9 offset:{L_CNT}
ds_read_b32 v13, v12 offset:{L_FLAG}
s_waitcnt lgkmcnt(0)
v_add_u32 v10, 1, v10
v_lshrrev_b32 v10, 1, v10
v_max_u32 v10, 1, v10
v_cmp_gt_u32 vcc, {NPR}, v1
v_cndmask_b32 v10, 0, v10, vcc
v_mov_b32 v11, v10
v_add_u32_dpp v11, v11, v11 row_shr:1 row_mask:0xf bank_mask:0xf bound_ctrl:0
v_add_u32_dpp v11, v11, v11 row_shr:2 row_mask:0xf bank_mask:0xf bound_ctrl:0
v_add_u32_dpp v11, v11, v11 row_shr:4 row_mask:0xf bank_mask:0xf bound_ctrl:0
v_add_u32_dpp v11, v11, v11 row_shr:8 row_mask:0xf bank_mask:0xf bound_ctrl:0
v_add_u32_dpp v11, v11, v11 row_bcast:15 row_mask:0xa bank_mask:0xf
v_add_u32_dpp v11, v11, v11 row_bcast:31 row_mask:0xc bank_mask:0xf
v_sub_u32 v14, v11, v10
v_readlane_b32 s52, v11, 63
v_readfirstlane_b32 s53, v13
""")
    a.e(f"""
s_cmp_gt_u32 s52, {CAP//2}
s_cbranch_scc1 K2_SLOW
s_cmp_lg_u32 s53, 0
s_cbranch_scc1 K2_SLOW
""")
    for e in range(4):
        a.e(f"""
v_lshrrev_b32 v10, 14, v{96+e}
v_lshlrev_b32 v10, 2, v10
ds_bpermute_b32 v{124+e}, v10, v14
""")
    a.e("s_waitcnt lgkmcnt(0)")
    for e in range(4):
        a.e(f"""
v_cmp_ne_u32 s[64:65], -1, v{96+e}
s_mov_b64 exec, s[64:65]
v_lshl_add_u32 v10, v{124+e}, 1, v{120+e}
v_lshlrev_b32 v10, 2, v10
v_and_b32 v13, 0x3fff, v{96+e}
v_mul_u32_u24 v13, 640, v13
ds_write_b32 v10, v13 offset:{L_OFF}
ds_write_b32 v10, v{96+e} offset:{L_REC}
s_mov_b64 exec, -1
""")
    a.e(f"""
s_cmp_lg_u32 s3, 0
s_cbranch_scc1 K2_NOENDF
v_cmp_gt_u32 vcc, {NPR}, v1
s_and_saveexec_b64 s[62:63], vcc
v_lshlrev_b32 v10, 2, v11
v_mov_b32 v13, 1
ds_write_b32 v10, v13 offset:{L_END-4}
s_mov_b64 exec, s[62:63]
""")
    a.label("K2_NOENDF")
    a.e(f"""
v_cvt_f32_u32 v10, v14
v_cvt_f32_u32 v13, s52
v_rcp_f32 v13, v13
v_mul_f32 v13, 8.0, v13
v_mul_f32 v10, v10, v13
v_cvt_u32_f32 v10, v10
v_min_u32 v10, 7, v10
v_cmp_gt_u32 vcc, {NPR}, v1
v_cndmask_b32 v10, 8, v10, vcc
v_cmp_eq_u32 s[64:65], s3, v10
s_ff1_i32_b64 s50, s[64:65]
s_flbit_i32_b64 s53, s[64:65]
s_sub_u32 s53, 63, s53
s_cmp_eq_u64 s[64:65], 0
s_cselect_b32 s50, 0, s50
s_cselect_b32 s53, 0, s53
v_readlane_b32 s48, v14, s50
v_readlane_b32 s49, v11, s53
s_cselect_b32 s49, 0, s49
s_cselect_b32 s48, 0, s48
""".replace("v_mul_f32 v13, 8.0, v13","s_mov_b32 s54, 0x41000000\nv_mul_f32 v13, s54, v13"))
    a.e("s_waitcnt lgkmcnt(0)\ns_barrier")
    stamp(a)
    a.e(f"""
v_lshlrev_b32 v9, 2, v0
ds_read_b32 v96, v9 offset:{L_REC}
s_lshl_b32 s52, s48, 3
v_lshlrev_b32 v6, 2, v3
v_add_u32 v6, s52, v6
""")
    for i in range(D):
        a.e(f"ds_read_b32 v{104+16+i}, v6 offset:{L_OFF+8*i}")
    a.e(f"""
v_lshlrev_b32 v7, 4, v2
v_lshlrev_b32 v8, 2, v2
s_waitcnt lgkmcnt({D})
v_and_b32 v97, 0x3fff, v96
v_lshrrev_b32 v98, 14, v96
s_mul_i32 s52, s4, {NPR}
v_add_u32 v98, s52, v98
v_cmp_ne_u32 s[66:67], -1, v96
v_mul_u32_u24 v99, 6, v97
v_and_b32 v99, -4, v99
v_mul_u32_u24 v100, 6, v98
v_and_b32 v100, -4, v100
s_mov_b64 exec, s[66:67]
buffer_load_dwordx2 v[116:117], v99, s[28:31], 0 offen
buffer_load_dwordx2 v[118:119], v100, s[28:31], 0 offen
s_mov_b64 exec, -1
s_waitcnt lgkmcnt(0)
""")
    for i in range(D):
        a.e(f"""
s_add_u32 s52, s48, {i}
s_cmp_lt_u32 s52, s49
s_cselect_b32 s53, 0, {OOB}
v_add_u32 v10, v{120+i}, v7
v_add_u32 v11, v{120+i}, v8
buffer_load_dwordx4 v[{RING+4*i}:{RING+4*i+3}], v10, s[32:35], s53 offen
buffer_load_dword v{UZ+i}, v11, s[32:35], s53 offen offset:512
""")
    a.e(f"s_waitcnt vmcnt({2*D})")
    stamp(a)
    for X in range(3):
        for k in range(4):
            a.e(f"v_lshlrev_b32 v{W+8*X+2*k}, 16, v{104+X*4+k}\nv_and_b32 v{W+8*X+2*k+1}, s61, v{104+X*4+k}")
    emit_posext(a,97,116,100,106)
    emit_posext(a,98,118,103,106)
    emit_scalars(a,None,None,SC,100)
    a.e(f"""
v_mov_b32 v{SC+7}, 0
s_not_b64 s[64:65], s[66:67]
s_mov_b64 exec, s[64:65]
""")
    for i in range(7): a.e(f"v_mov_b32 v{SC+i}, 0")
    a.e(f"""
s_mov_b64 exec, -1
v_lshlrev_b32 v9, 5, v0
ds_write_b128 v9, v[{SC}:{SC+3}] offset:{L_SCAL}
ds_write_b128 v9, v[{SC+4}:{SC+7}] offset:{L_SCAL+16}
v_lshlrev_b32 v4, 8, v3
v_add_u32 v4, v4, v8
v_add_u32 v4, {L_RES}, v4
v_lshlrev_b32 v5, 9, v3
v_add_u32 v5, v5, v8
s_lshl_b32 s52, s5, 7
v_add_u32 v5, s52, v5
s_mul_i32 s51, s4, {NPR}
s_add_u32 s51, s51, s50
s_lshl_b32 s51, s51, 10
""")
    for i in range(8): a.e(f"v_mov_b32 v{ACC+i}, 0")
    a.e(f"""
v_lshlrev_b32 v9, 3, v6
s_waitcnt lgkmcnt(0)
s_barrier
""")
    stamp(a)
    a.e("s_cmp_ge_u32 s48, s49\ns_cbranch_scc1 K2_DONE")
    a.label("K2_LOOP")
    a.e(f"""
s_lshl_b32 s52, s48, 2
v_lshlrev_b32 v10, 2, v1
v_add_u32 v10, s52, v10
ds_read_b32 v11, v10 offset:{L_END}
ds_read_b128 v[{SC}:{SC+3}], v9 offset:{L_SCAL}
ds_read_b128 v[{SC+4}:{SC+7}], v9 offset:{L_SCAL+16}
s_waitcnt lgkmcnt(2)
v_cmp_ne_u32 s[64:65], 0, v11
""")
    for i in range(D):
        sc=SC+8*(i&1); scn=SC+8*((i+1)&1)
        a.e(f"ds_read_b32 v12, v6 offset:{L_OFF+8*(D+i)}")
        if i<D-1:
            a.e(f"ds_read_b128 v[{scn}:{scn+3}], v9 offset:{L_SCAL+64*(i+1)}")
            a.e(f"ds_read_b128 v[{scn+4}:{scn+7}], v9 offset:{L_SCAL+64*(i+1)+16}")
            a.e(f"s_waitcnt vmcnt({2*(D-1)}) lgkmcnt(3)")
        else:
            a.e(f"s_waitcnt vmcnt({2*(D-1)}) lgkmcnt(1)")
        emit_step(a,RING+4*i,UZ+i,sc)
        a.e(f"""
s_add_u32 s52, s48, {D+i}
s_cmp_lt_u32 s52, s49
s_cselect_b32 s53, 0, {OOB}
s_waitcnt lgkmcnt({2 if i<D-1 else 0})
v_add_u32 v10, v12, v7
v_add_u32 v11, v12, v8
buffer_load_dwordx4 v[{RING+4*i}:{RING+4*i+3}], v10, s[32:35], s53 offen
buffer_load_dword v{UZ+i}, v11, s[32:35], s53 offen offset:512
s_bitcmp0_b64 s[64:65], {i}
s_cbranch_scc1 K2_NOFIN{i}
""")
        emit_finalize(a)
        a.label(f"K2_NOFIN{i}")
        a.e(f"""
s_add_u32 s52, s48, {i+1}
s_cmp_ge_u32 s52, s49
s_cbranch_scc1 K2_DONE
""")
    a.e(f"""
s_add_u32 s48, s48, {D}
v_add_u32 v6, {8*D}, v6
v_add_u32 v9, {64*D}, v9
s_branch K2_LOOP
""")
    a.label("K2_SLOW")
    a.e("s_nop 0")
    a.label("K2_DONE")
    stamp(a)
    stamp_flush(a,20,kid=1,vt=126)
    a.label("K2_END")
    a.e("s_endpgm")
```

```python
import sys
from common import *
import k1, k2
Cfg.stamps = 'stamps' in sys.argv
out = [x for x in sys.argv[1:] if x.endswith('.s')]
out = out[0] if out else 'full.s'
a=Asm(); k1.gen_k1(a); l1,n1=hazard_pass(a.lines)
b=Asm(); k2.gen_k2(b); l2,n2=hazard_pass(b.lines)
hdr_src=open('standalone__molecular_angular_painn__graph.s.ref').read().split('\n')
cm=[l for l in hdr_src if l.startswith(';') and '@launch' not in l and 'Override launch' not in l and 'grid=ceil' not in l]
cm=cm[:12]
LL={'1':f'; @launch kernel=painn_k1_kernel grid=({NWG1},1,1) block=(512,1,1) lds={k1.LDS1}',
    '2':f'; @launch kernel=painn_k2_kernel grid=({k2.NWG2},1,1) block=(512,1,1) lds={k2.LDS2+256}',
    'e':'; @launch kernel=painn_e_kernel grid=(256,1,1) block=(256,1,1) lds=0'}
order=[x[6:] for x in sys.argv if x.startswith('order=')]
order=order[0] if order else '12'
txt='\n'.join(cm)+'\n'+'\n'.join(LL[c] for c in order)+f"""
.amdgcn_target "amdgcn-amd-amdhsa--gfx950"
.text
.globl painn_k1_kernel
.p2align 8
.type painn_k1_kernel,@function
painn_k1_kernel:
"""+'\n'.join(l1)+"""
.globl painn_k2_kernel
.p2align 8
.type painn_k2_kernel,@function
painn_k2_kernel:
"""+'\n'.join(l2)+('\n.globl painn_e_kernel\n.p2align 8\n.type painn_e_kernel,@function\npainn_e_kernel:\ns_endpgm' if 'e' in order else '')+'\n.section .rodata,"a"\n.p2align 6'+(KD.format(name='painn_e_kernel',v=8,s=16,acc=8)+'.p2align 6' if 'e' in order else '')+KD.format(name='painn_k1_kernel',v=256,s=102,acc=256)+'.p2align 6'+KD.format(name='painn_k2_kernel',v=128,s=102,acc=128)
open(out,'w').write(txt)
print('nops',n1,n2,'lines',len(l1),len(l2))
```

```python
import sys
from common import *
import k1, k2
Cfg.stamps = 'stamps' in sys.argv
out = [x for x in sys.argv[1:] if x.endswith('.s')]
out = out[0] if out else 'full.s'
a=Asm(); k1.gen_k1(a); l1,n1=hazard_pass(a.lines)
b=Asm(); k2.gen_k2(b); l2,n2=hazard_pass(b.lines)
def policy(lines, rules):
    out=[]
    for l in lines:
        for (pat,flag) in rules:
            if re.search(pat,l): l=(l[:-4]+' '+flag+' lds') if l.endswith(' lds') else (l+' '+flag)
        out.append(l)
    return out
import re
opts=[x for x in sys.argv if x.startswith('nt=')]
opts=opts[0][3:] if opts else ''
r1=[]; r2=[]
if 'a' in opts: r1+= [(r'buffer_load.*s\[24:27\]','nt'),(r'buffer_load.*s\[32:35\]','nt'),(r'buffer_load.*s\[36:39\]','nt')]
if 'w' in opts: r1+= [(r'buffer_load.*s\[40:43\]','nt'),(r'buffer_load.*s\[44:47\]','nt'),(r'buffer_load.*s\[28:31\]','nt')]
if 'b' in opts: r2+= [(r'buffer_load.*s\[56:59\]','nt')]
if 'c' in opts: r2+= [(r'buffer_store.*s\[24:27\]','nt')]
if 'd' in opts: r1+= [(r'buffer_store.*s\[48:51\]','nt')]
if 'e' in opts: r1+= [(r'buffer_store.*s\[48:51\]','sc1')]
if 'f' in opts: r1+= [(r'buffer_store.*s\[48:51\]','sc0 sc1')]
l1=policy(l1,r1); l2=policy(l2,r2)
hdr_src=open('standalone__molecular_angular_painn__graph.s.ref').read().split('\n')
cm=[l for l in hdr_src if l.startswith(';') and '@launch' not in l and 'Override launch' not in l and 'grid=ceil' not in l]
cm=cm[:12]
LL={'1':f'; @launch kernel=painn_k1_kernel grid=({NWG1},1,1) block=(512,1,1) lds={k1.LDS1}',
    '2':f'; @launch kernel=painn_k2_kernel grid=({k2.NWG2},1,1) block=(512,1,1) lds={k2.LDS2+256}',
    'e':'; @launch kernel=painn_e_kernel grid=(256,1,1) block=(256,1,1) lds=0'}
order=[x[6:] for x in sys.argv if x.startswith('order=')]
order=order[0] if order else '12'
txt='\n'.join(cm)+'\n'+'\n'.join(LL[c] for c in order)+f"""
.amdgcn_target "amdgcn-amd-amdhsa--gfx950"
.text
.globl painn_k1_kernel
.p2align 8
.type painn_k1_kernel,@function
painn_k1_kernel:
"""+'\n'.join(l1)+"""
.globl painn_k2_kernel
.p2align 8
.type painn_k2_kernel,@function
painn_k2_kernel:
"""+'\n'.join(l2)+('\n.globl painn_e_kernel\n.p2align 8\n.type painn_e_kernel,@function\npainn_e_kernel:\ns_endpgm' if 'e' in order else '')+'\n.section .rodata,"a"\n.p2align 6'+(KD.format(name='painn_e_kernel',v=8,s=16,acc=8)+'.p2align 6' if 'e' in order else '')+KD.format(name='painn_k1_kernel',v=256,s=102,acc=256)+'.p2align 6'+KD.format(name='painn_k2_kernel',v=128,s=102,acc=128)
open(out,'w').write(txt)
print('nops',n1,n2,'lines',len(l1),len(l2))
```
